```python
import torch

def _softmax(x, axis=-1):
    return torch.softmax(x, dim=axis)
def _gelu(x):
    return torch.nn.functional.gelu(x, approximate="tanh")
def _silu(x):
    return torch.nn.functional.silu(x)
def _sigmoid(x):
    return torch.sigmoid(x)
def _layernorm(x, axis=-1, eps=1e-5):
    m = x.mean(dim=axis, keepdim=True)
    v = x.var(dim=axis, keepdim=True, unbiased=False)
    return (x - m) / torch.sqrt(v + eps)
def _scatter_add(tgt, idx, src, axis=0):
    return tgt.clone().index_add_(axis, idx, src)
def _segment_sum(src, seg, n):
    out = torch.zeros((n,) + src.shape[1:], dtype=src.dtype)
    return out.index_add_(0, seg, src)
def _pad(x, pw):
    flat = tuple(v for pair in reversed(pw) for v in pair)
    return torch.nn.functional.pad(x, flat)

kernel_name = 'recurrent_scan__gqa_block_cached__glu_gated_geglu__decode'

def setup_inputs():

    _w = (lambda a: (lambda t: t.to(torch.bfloat16) if t.is_floating_point() else t)(torch.as_tensor(a)))
    def _A_setup():
        B, Sq, D = 2, 1, 512
        Hq, Hkv, Sk, Dh = 32, 8, 32768, 128
        assert Hq % Hkv == 0, (Hq, Hkv)
        return {
            "x": _w((lambda *s: torch.randn(*s, dtype=torch.bfloat16) * 0.4)(B, Sq, D)),
            "k_cache": _w((lambda *s: torch.randn(*s, dtype=torch.bfloat16) * 1.6)(B, Hkv, Sk, Dh)),
            "v_cache": _w((lambda *s: torch.randn(*s, dtype=torch.bfloat16) * 1.6)(B, Hkv, Sk, Dh)),
            "wq": _w((lambda *s: torch.randn(*s, dtype=torch.bfloat16) * 1.6)(D, Hq * Dh) * (D ** -0.5)),
            "wo": _w((lambda *s: torch.randn(*s, dtype=torch.bfloat16) * 1.6)(Hq * Dh, D) * ((Hq * Dh) ** -0.5)),
        }
    _A_in = _A_setup()

    def _B_setup():
        B, S, Dm, Df = 2, 1, 512, 1792
        return {
            "x": _w((lambda *s: torch.randn(*s, dtype=torch.bfloat16) * 0.4)(B, S, Dm)),
            "w_gate": _w((lambda *s: torch.randn(*s, dtype=torch.bfloat16) * 1.6)(Dm, Df) * (Dm ** -0.5)),
            "w_up": _w((lambda *s: torch.randn(*s, dtype=torch.bfloat16) * 1.6)(Dm, Df) * (Dm ** -0.5)),
            "w_down": _w((lambda *s: torch.randn(*s, dtype=torch.bfloat16) * 1.6)(Df, Dm) * (Df ** -0.5)),
        }
    _B_in = _B_setup()

    return {
        "A_x": _A_in["x"],
        "A_k_cache": _A_in["k_cache"],
        "A_v_cache": _A_in["v_cache"],
        "A_wq": _A_in["wq"],
        "A_wo": _A_in["wo"],
        "B_x": _B_in["x"],
        "B_w_gate": _B_in["w_gate"],
        "B_w_up": _B_in["w_up"],
        "B_w_down": _B_in["w_down"],
    }

def reference(A_x, A_k_cache, A_v_cache, A_wq, A_wo, B_x, B_w_gate, B_w_up, B_w_down):
    def _A_ref(x, k_cache, v_cache, wq, wo):
        B, Sq, D = x.shape
        Hq, Dh = 32, 128
        Hkv = k_cache.shape[1]
        rep = Hq // Hkv
        q = (lambda x, *d: x.permute(*d))((x @ wq).reshape(B, Sq, Hq, Dh), 0, 2, 1, 3)
        k = (lambda x, n, axis: torch.repeat_interleave(x, n, dim=axis))(k_cache, rep, axis=1)
        v = (lambda x, n, axis: torch.repeat_interleave(x, n, dim=axis))(v_cache, rep, axis=1)
        scores = torch.einsum("bhqd,bhkd->bhqk", q, k) * (Dh ** -0.5)
        p = _softmax(scores, axis=-1)
        o = torch.einsum("bhqk,bhkd->bhqd", p, v)
        return (lambda x, *d: x.permute(*d))(o, 0, 2, 1, 3).reshape(B, Sq, Hq * Dh) @ wo

    def _B_ref(x, w_gate, w_up, w_down):
        g = torch.einsum("bsd,df->bsf", x, w_gate)
        u = torch.einsum("bsd,df->bsf", x, w_up)
        h = _gelu(g) * u
        return torch.einsum("bsf,fd->bsd", h, w_down)

    x = A_x
    xn = _layernorm(x, axis=-1)
    s = _A_ref(xn, A_k_cache, A_v_cache, A_wq, A_wo)
    g = _silu(_B_ref(xn, B_w_gate, B_w_up, B_w_down))
    return x + s * g
```

```python
import re

_REG = re.compile(r'^(-|abs\()?([vsa])(\d+)\)?$')
_RNG = re.compile(r'^(-)?([vsa])\[(\d+):(\d+)\]$')
TRANS = ("v_exp_f32", "v_log_f32", "v_rcp_f32", "v_rsq_f32", "v_sqrt_f32", "v_sin_f32", "v_cos_f32")

def regs_of(tok):
    tok = tok.strip()
    m = _REG.match(tok)
    if m: return {(m.group(2), int(m.group(3)))}
    m = _RNG.match(tok)
    if m: return {(m.group(2), i) for i in range(int(m.group(3)), int(m.group(4)) + 1)}
    if tok == "vcc": return {("s", "vcc")}
    if tok == "exec": return {("s", "exec")}
    if tok == "m0": return {("s", "m0")}
    return set()

class Ins:
    def __init__(self, text):
        self.text = text
        t = text.split(";")[0].strip()
        self.label = t.endswith(":")
        self.op = None
        self.rd = set(); self.wr = set()
        self.kind = "other"
        self.states = 1
        if self.label or not t or t.startswith("."):
            self.states = 0
            return
        parts = t.split(None, 1)
        op = parts[0]; self.op = op
        rest = parts[1] if len(parts) > 1 else ""
        ops = [x.strip() for x in rest.split(",")] if rest else []
        mods = ""
        if ops:
            joined = rest
            joined = re.sub(r'\[(\d),(\d),(\d),(\d)\]', r'[\1_\2_\3_\4]', joined)
            joined = re.sub(r'(op_sel\w*|neg_\w+):\[([^\]]*)\]', lambda m: m.group(1) + ":" + m.group(2).replace(",", "_"), joined)
            ops = [x.strip() for x in joined.split(",")]
            last = ops[-1].split(None, 1)
            ops[-1] = last[0]
            mods = last[1] if len(last) > 1 else ""
        self.mods = mods
        R = [regs_of(x) for x in ops]
        allr = set().union(*R) if R else set()
        self.dpp = ("_dpp" in op) or ("row_" in mods) or ("quad_perm" in mods)
        if op == "s_nop":
            self.states = int(ops[0], 0) + 1; self.kind = "nop"
        elif op.startswith("v_mfma"):
            self.kind = "mfma"; self.wr = R[0]; self.srca = R[1]; self.srcb = R[2]; self.srcc = R[3]
            self.rd = R[1] | R[2] | R[3]
            self.passes = 8 if "32x32" in op else 4
        elif op.startswith("v_"):
            self.kind = "valu"
            if op.startswith("v_permlane") and "swap" in op:
                self.wr = R[0] | R[1]; self.rd = R[0] | R[1]; self.kind = "valu"; self.perml = True
            elif op.startswith("v_cmp"):
                self.wr = R[0]; self.rd = set().union(*R[1:])
            elif op.startswith(("v_add_co", "v_sub_co", "v_addc_co", "v_subb_co")):
                self.wr = R[0] | R[1]; self.rd = set().union(*R[2:])
            else:
                self.wr = R[0]; self.rd = set().union(*R[1:]) if len(R) > 1 else set()
                if op.startswith(("v_fmac", "v_dot2c", "v_pk_fmac")) or self.dpp or op.startswith("v_writelane"):
                    self.rd |= R[0]
        elif op.startswith("ds_"):
            self.kind = "ds"
            if op.startswith(("ds_read", "ds_bpermute", "ds_permute", "ds_swizzle")):
                self.wr = R[0]; self.rd = set().union(*R[1:])
            else:
                self.rd = allr
        elif op.startswith(("buffer_", "global_", "flat_")):
            self.kind = "vmem"
            islds = (" lds" in (" " + mods)) or ("_lds_" in op)
            self.islds = islds
            if "load" in op and not islds:
                self.wr = R[0]; self.rd = set().union(*R[1:])
            elif "atomic" in op and "sc0" in mods:
                self.wr = R[0]; self.rd = set().union(*R[1:])
            else:
                self.rd = allr
            self.wide_store = ("store" in op) and op.endswith(("x3", "x4"))
            if self.wide_store:
                self.sdata = R[0] if op.startswith("buffer_") else R[1]
        elif op.startswith("s_"):
            self.kind = "salu"
            if op.startswith(("s_cmp", "s_cbranch", "s_branch", "s_waitcnt", "s_barrier", "s_sleep", "s_setprio", "s_endpgm", "s_bitcmp")):
                self.rd = allr
            else:
                self.wr = R[0] if R else set(); self.rd = set().union(*R[1:]) if len(R) > 1 else set()
                if "saveexec" in op: self.wr = self.wr | {("s", "exec")}

def need(prod, cons):
    n = 0
    pv = {r for r in prod.wr if r[0] in "va"}
    ps = {r for r in prod.wr if r[0] == "s"}
    if prod.kind == "valu":
        if cons.kind == "mfma" and pv & cons.rd: n = max(n, 2)
        if cons.kind == "valu":
            if (cons.dpp or getattr(cons, "perml", False)) and pv & cons.rd: n = max(n, 2)
            if cons.op.startswith(("v_readfirstlane", "v_readlane")) and pv & cons.rd: n = max(n, 1)
            if prod.op.startswith(TRANS) and pv & cons.rd: n = max(n, 1)
            if ps & cons.rd: n = max(n, 4 if cons.op.startswith(("v_readlane", "v_writelane")) else 2)
            if ("sdwa" in prod.op or "op_sel" in prod.mods) and pv & (cons.rd | cons.wr): n = max(n, 1)
        if cons.kind == "vmem" and ps & cons.rd: n = max(n, 5)
        if cons.kind == "salu" and ps & cons.rd: n = max(n, 1)
        if prod.op.startswith(TRANS) and cons.kind in ("vmem", "ds", "mfma") and pv & cons.rd: n = max(n, 2)
    if prod.kind == "mfma":
        big = 8 if prod.passes == 4 else 12
        if cons.kind == "mfma":
            if pv & (cons.srca | cons.srcb): n = max(n, big)
            if pv & cons.srcc and not (cons.srcc == pv): n = max(n, big - 2)
            if pv & cons.wr and not (cons.srcc == pv and cons.wr == pv): n = max(n, big)
        elif cons.kind in ("valu", "vmem", "ds"):
            if pv & (cons.rd | cons.wr): n = max(n, big)
            if cons.kind == "valu" and prod.srcc & cons.wr: n = max(n, 3 if prod.passes == 4 else 7)
    if prod.kind == "salu" and ("s", "m0") in prod.wr and cons.kind == "vmem" and getattr(cons, "islds", False):
        n = max(n, 1)
    if prod.kind == "vmem" and getattr(prod, "wide_store", False):
        if cons.kind in ("valu", "mfma", "ds", "vmem") and prod.sdata & cons.wr: n = max(n, 2)
    return n

class Asm:
    def __init__(self):
        self.lines = []
    def __call__(self, s):
        for l in s.split("\n"):
            if l.strip():
                self.lines.append(l.rstrip())
    def finalize(self):
        out = []
        hist = []
        nins = 0
        for l in self.lines:
            ins = Ins(l)
            if ins.op is None:
                out.append(l); continue
            dist = 0; req = 0
            for p in reversed(hist):
                k = need(p, ins)
                if k > dist: req = max(req, k - dist)
                dist += p.states
                if dist >= 16: break
            if req > 0:
                nop = Ins(f"  s_nop {req-1}")
                out.append(nop.text + "   ; auto"); hist.append(nop); nins += 1
            out.append(l); hist.append(ins)
            hist = hist[-24:]
        self.auto_nops = nins
        return "\n".join(out) + "\n"
```

```python
import sys, struct
from asmlib import Asm
NAME = "recurrent_scan__gqa_block_cached__glu_gated_geglu__decode"

def f32(x):
    return "0x%08x" % struct.unpack("<I", struct.pack("<f", x))[0]

EPOCH = 0x0
TICK  = 0x1000
QBUF  = 0x10000
PO    = 0x20000
PML   = 0xA0000
HBUF  = 0xA4000
SY    = 0xB0000
STAMP = 0x10000000
RING  = 32768
AUXB  = 4 * RING
W0    = AUXB
W1    = AUXB + 16384
XN    = AUXB + 24576
QL    = AUXB + 26624
OB    = AUXB + 27648
LDS_TOTAL = AUXB + 28672
LOG2E = 1.4426950408889634
SCALE = 128 ** -0.5
POLL_LIMIT = 50000

def gen(path, stamps=False, kvflags="nt", wflags="nt", sleep=2):
    A = Asm()
    hdr = open("cdna_kernels/" + NAME + ".s.ref").read().split("\n")
    for l in hdr:
        if l.startswith("; @launch"):
            A(f"; @launch grid=(256,1,1) block=(320,1,1) lds={LDS_TOTAL}")
        elif l.startswith(";"):
            A(l)
        else:
            break
    A(f'''.amdgcn_target "amdgcn-amd-amdhsa--gfx950"
.text
.globl {NAME}_kernel
.p2align 8
.type {NAME}_kernel,@function
{NAME}_kernel:''')
    nst = [0]
    def stamp(k):
        if stamps:
            A(f"  s_memrealtime s[{80+2*k}:{81+2*k}]")
    A("  s_cmp_ge_u32 s2, 256\n  s_cbranch_scc1 L_end")
    stamp(0)
    A('''  s_load_dwordx16 s[4:19], s[0:1], 0
  s_load_dwordx8 s[20:27], s[0:1], 64
  v_lshrrev_b32 v1, 6, v0
  v_and_b32 v0, 63, v0
  v_readfirstlane_b32 s3, v1
  s_lshr_b32 s40, s2, 4          ; grp
  s_and_b32 s41, s40, 7          ; kvh
  s_lshr_b32 s42, s40, 3         ; b
  s_and_b32 s43, s2, 15          ; i
  v_lshrrev_b32 v2, 4, v0        ; g
  v_and_b32 v3, 15, v0           ; n
  s_cmp_eq_u32 s3, 4
  s_cbranch_scc1 L_aux''')

    A('''  v_lshlrev_b32 v4, 1, v2
  v_xor_b32 v4, v4, v3
  v_lshlrev_b32 v4, 4, v4
  v_lshl_add_u32 v4, v2, 8, v4
  v_xor_b32 v5, 0x80, v4
  s_lshl_b32 s44, s3, 15
  s_lshl_b32 s45, s43, 2
  s_add_u32 s45, s45, s3
  s_lshl_b32 s45, s45, 13
  s_add_u32 s46, s45, 0x80000    ; chunk B0
  s_add_u32 s47, s45, 0x100000   ; chunk A1
  s_lshl_b32 s48, s40, 23
  s_mov_b32 s30, 0x800000
  s_mov_b32 s31, 0x20000
  s_mov_b32 s34, 0x800000
  s_mov_b32 s35, 0x20000
  s_waitcnt lgkmcnt(0)
  s_add_u32 s28, s6, s48
  s_addc_u32 s29, s7, 0
  s_add_u32 s32, s8, s48
  s_addc_u32 s33, s9, 0''')
    def issue4(srd, soff, ldsoff, half):
        A(f"  s_add_u32 m0, s44, {ldsoff + half*4096}")
        if half:
            A(f"  s_add_u32 s49, {soff}, 4096")
            so = "s49"
        else:
            so = soff
        for i in range(4):
            A(f"  buffer_load_dwordx4 v{4 + (i & 1)}, {srd}, {so} offen offset:{i*1024} {kvflags} lds")
    KS, VS = "s[28:31]", "s[32:35]"
    def issueK(soff, buf):
        issue4(KS, soff, buf*16384, 0); issue4(KS, soff, buf*16384, 1)
    def issueV(soff, buf):
        issue4(VS, soff, buf*16384 + 8192, 0); issue4(VS, soff, buf*16384 + 8192, 1)
    issueK("s45", 0)
    A('''  v_and_b32 v23, 7, v3
  v_lshlrev_b32 v23, 1, v23
  v_xor_b32 v23, v23, v2
  v_lshlrev_b32 v23, 4, v23
  v_lshl_add_u32 v23, v3, 8, v23
  v_add_u32 v6, s44, v23
  v_xor_b32 v7, 64, v6
  v_xor_b32 v8, 0x80, v6
  v_xor_b32 v9, 0xc0, v6
  v_lshrrev_b32 v23, 2, v0       ; kk
  v_and_b32 v24, 7, v23
  v_lshlrev_b32 v24, 5, v24      ; (kk&7)*32
  v_lshl_add_u32 v24, v23, 8, v24
  v_and_b32 v25, 3, v0
  v_lshl_add_u32 v24, v25, 3, v24  ; + c*8
  v_add_u32 v10, s44, v24''')
    for t in range(1, 8):
        A(f"  v_xor_b32 v{10+t}, {32*t}, v10")
    A(f'''  s_lshl_b32 s50, s40, 8
  s_add_u32 s50, s50, {TICK}
  v_mov_b32 v18, s50
  v_mov_b32 v19, 1
  v_mov_b32 v21, 0xff800000
  v_mov_b32 v22, 0
  s_mov_b32 s51, {f32(SCALE)}
  s_mov_b32 s52, {f32(LOG2E)}
  s_mov_b32 s53, 0xffff0000''')
    for r in range(96, 128):
        A(f"  v_mov_b32 v{r}, 0")
    seq = [(VS, "s45", 8192, 0), (VS, "s45", 8192, 1),
           (KS, "s46", 16384, 0), (KS, "s46", 16384, 1), (VS, "s46", 24576, 0), (VS, "s46", 24576, 1)]
    for (srd, so, lo, h) in seq:
        A("  s_waitcnt vmcnt(4)")
        issue4(srd, so, lo, h)
    A(f'''  v_and_b32 v23, 3, v0
  v_lshlrev_b32 v23, 8, v23
  v_lshl_add_u32 v23, v2, 4, v23
  v_add_u32 v23, {QL}, v23
  s_barrier''')
    for s in range(4):
        A(f"  ds_read_b128 v[{32+4*s}:{35+4*s}], v23 offset:{64*s}")

    def ticket():
        A('''  s_mov_b64 exec, 1
  global_atomic_add v20, v18, v19, s[26:27] sc0 sc1
  s_mov_b64 exec, -1''')

    def readK(buf):
        for tau in range(2):
            for s in range(4):
                r = 48 + tau*16 + s*4
                A(f"  ds_read_b128 v[{r}:{r+3}], v{6+s} offset:{buf*16384 + tau*4096}")
    def qk_softmax():
        for s in range(4):
            for tau in range(2):
                r = 48 + tau*16 + s*4
                c = "0" if s == 0 else f"v[{80+4*tau}:{83+4*tau}]"
                A(f"  v_mfma_f32_16x16x32_bf16 v[{80+4*tau}:{83+4*tau}], v[{r}:{r+3}], v[{32+4*s}:{35+4*s}], {c}")
        for j in range(4):
            A(f"  v_cvt_pk_bf16_f32 v{88+j}, v{80+2*j}, v{81+2*j}")
        for j in range(4):
            A(f"  v_lshlrev_b32 v{80+2*j}, 16, v{88+j}")
            A(f"  v_and_b32 v{81+2*j}, s53, v{88+j}")
        for j in range(8):
            A(f"  v_mul_f32 v{80+j}, s51, v{80+j}")
        for j in range(4):
            A(f"  v_cvt_pk_bf16_f32 v{88+j}, v{80+2*j}, v{81+2*j}")
        for j in range(4):
            A(f"  v_lshlrev_b32 v{80+2*j}, 16, v{88+j}")
            A(f"  v_and_b32 v{81+2*j}, s53, v{88+j}")
        A('''  v_max3_f32 v23, v80, v81, v82
  v_max3_f32 v24, v83, v84, v85
  v_max3_f32 v23, v23, v86, v87
  v_max3_f32 v23, v23, v24, v21
  v_mov_b32 v24, v23
  v_permlane16_swap_b32 v23, v24
  v_max_f32 v23, v23, v24
  v_mov_b32 v24, v23
  v_permlane32_swap_b32 v23, v24
  v_max_f32 v23, v23, v24
  v_sub_f32 v24, v21, v23
  v_mov_b32 v21, v23
  v_mul_f32 v24, s52, v24''')
        for j in range(8):
            A(f"  v_sub_f32 v{80+j}, v{80+j}, v23")
        A("  v_exp_f32 v24, v24           ; alpha")
        for j in range(8):
            A(f"  v_mul_f32 v{80+j}, s52, v{80+j}")
        for j in range(8):
            A(f"  v_exp_f32 v{80+j}, v{80+j}")
        A("  v_mul_f32 v22, v22, v24")
        for r in range(96, 128):
            A(f"  v_mul_f32 v{r}, v{r}, v24")
        for j in range(4):
            A(f"  v_cvt_pk_bf16_f32 v{88+j}, v{80+2*j}, v{81+2*j}")
        A('''  v_add_f32 v80, v80, v81
  v_add_f32 v82, v82, v83
  v_add_f32 v84, v84, v85
  v_add_f32 v86, v86, v87
  v_add_f32 v80, v80, v82
  v_add_f32 v84, v84, v86
  v_add_f32 v80, v80, v84
  v_add_f32 v22, v22, v80''')
    def readV(buf):
        for t in range(8):
            for tau in range(2):
                r = 48 + t*4 + tau*2
                A(f"  ds_read_b64_tr_b16 v[{r}:{r+1}], v{10+t} offset:{buf*16384 + 8192 + tau*4096}")
    def pv():
        for t in range(8):
            A(f"  v_mfma_f32_16x16x32_bf16 v[{96+4*t}:{99+4*t}], v[{48+4*t}:{51+4*t}], v[88:91], v[{96+4*t}:{99+4*t}]")

    readK(0)
    A("  s_waitcnt lgkmcnt(0)")
    issueK("s47", 0)
    ticket()
    qk_softmax()
    readV(0)
    A("  s_waitcnt lgkmcnt(0)")
    issueV("s47", 0)
    pv()
    readK(1)
    A("  s_waitcnt lgkmcnt(0)")
    qk_softmax()
    A("  s_waitcnt vmcnt(17)")
    readV(1)
    A("  s_waitcnt lgkmcnt(0)")
    pv()
    A("L_loop:")
    A("  s_waitcnt vmcnt(8)")
    readK(0)
    A('''  v_readfirstlane_b32 s47, v20
  s_lshl_b32 s47, s47, 13
  s_cmp_ge_u32 s47, 0x800000
  s_cselect_b32 s54, 1, 0
  s_waitcnt lgkmcnt(0)
  s_cbranch_scc1 L_skipK''')
    issueK("s47", 0)
    ticket()
    A("L_skipK:")
    qk_softmax()
    A('''  s_cmp_eq_u32 s54, 1
  s_cbranch_scc1 L_last
  s_waitcnt vmcnt(9)''')
    readV(0)
    A("  s_waitcnt lgkmcnt(0)")
    issueV("s47", 0)
    pv()
    A("  s_branch L_loop")
    A("L_last:")
    A("  s_waitcnt vmcnt(0)")
    readV(0)
    A("  s_waitcnt lgkmcnt(0)")
    pv()
    A(f'''  v_mov_b32 v24, v22
  v_permlane16_swap_b32 v22, v24
  v_add_f32 v22, v22, v24
  v_mov_b32 v24, v22
  v_permlane32_swap_b32 v22, v24
  v_add_f32 v22, v22, v24
  v_lshlrev_b32 v23, 9, v3
  v_lshl_add_u32 v23, v2, 4, v23
  v_add_u32 v23, s44, v23
  v_lshlrev_b32 v25, 3, v3
  v_add_u32 v25, s44, v25
  v_mov_b32 v26, v21
  v_mov_b32 v27, v22
  s_mov_b32 exec_lo, 0x000f000f
  s_mov_b32 exec_hi, 0x000f000f''')
    for t in range(8):
        A(f"  ds_write_b128 v23, v[{96+4*t}:{99+4*t}] offset:{16384 + 64*t}")
    A(f'''  ds_write_b64 v25, v[26:27] offset:{16384+2048}
  s_mov_b64 exec, -1
  v_and_b32 v23, 31, v0
  v_lshlrev_b32 v23, 4, v23
  s_lshl_b32 s45, s3, 9
  v_add_u32 v24, s45, v23
  v_add_u32 v25, 0x10000, v24    ; (waves 2,3)
  s_lshl_b32 s45, s3, 3
  v_mov_b32 v26, s45
  v_add_u32 v27, 0x10000, v26
  s_lshl_b32 s45, s41, 2
  s_add_u32 s45, s45, s3
  s_lshl_b32 s45, s45, 1
  s_add_u32 s45, s45, s42
  s_lshl_b32 s45, s45, 4
  s_add_u32 s45, s45, s43
  s_lshl_b32 s46, s45, 9
  s_add_u32 s46, s46, {PO}
  s_lshl_b32 s47, s45, 4
  s_add_u32 s47, s47, {PML}
  v_add_u32 v28, s46, v23
  v_mov_b32 v29, s47
  v_cmp_gt_u32 vcc, 32, v0
  v_cndmask_b32 v28, v29, v28, vcc
  s_waitcnt lgkmcnt(0)
  s_barrier
  ds_read_b64 v[32:33], v26 offset:{16384+2048}
  ds_read_b64 v[34:35], v26 offset:{32768+16384+2048}
  ds_read_b64 v[36:37], v27 offset:{16384+2048}
  ds_read_b64 v[38:39], v27 offset:{32768+16384+2048}
  ds_read_b128 v[48:51], v24 offset:16384
  ds_read_b128 v[52:55], v24 offset:{32768+16384}
  ds_read_b128 v[56:59], v25 offset:16384
  ds_read_b128 v[60:63], v25 offset:{32768+16384}
  s_waitcnt lgkmcnt(4)
  v_max3_f32 v40, v32, v34, v36
  v_max_f32 v40, v40, v38
  v_sub_f32 v32, v32, v40
  v_sub_f32 v34, v34, v40
  v_sub_f32 v36, v36, v40
  v_sub_f32 v38, v38, v40
  v_mul_f32 v32, s52, v32
  v_mul_f32 v34, s52, v34
  v_mul_f32 v36, s52, v36
  v_mul_f32 v38, s52, v38
  v_exp_f32 v32, v32
  v_exp_f32 v34, v34
  v_exp_f32 v36, v36
  v_exp_f32 v38, v38
  v_mul_f32 v41, v32, v33
  v_fmac_f32 v41, v34, v35
  v_fmac_f32 v41, v36, v37
  v_fmac_f32 v41, v38, v39
  s_waitcnt lgkmcnt(0)''')
    for r in range(4):
        A(f"  v_mul_f32 v{48+r}, v32, v{48+r}")
    for u in range(1, 4):
        for r in range(4):
            A(f"  v_fmac_f32 v{48+r}, v{32+2*u}, v{48+4*u+r}")
    for r in range(4):
        A(f"  v_cndmask_b32 v{48+r}, v{40 + (r & 1)}, v{48+r}, vcc")
    for r in range(4):
        A(f"  v_min_u32 v{48+r}, -2, v{48+r}")
    A('''  s_mov_b32 exec_lo, -1
  s_mov_b32 exec_hi, 1
  global_store_dwordx4 v28, v[48:51], s[26:27] sc1
  s_endpgm''')

    A("L_aux:")
    A(f'''  s_setprio 3
  s_and_b32 s44, s2, 7           ; x / cblk
  s_lshr_b32 s45, s2, 3          ; idx
  s_and_b32 s46, s45, 1
  s_lshl_b32 s47, s42, 1
  s_or_b32 s46, s46, s47         ; hh
  s_lshl_b32 s47, s41, 2
  s_add_u32 s47, s47, s46        ; hg
  v_lshlrev_b32 v1, 4, v0        ; l*16
  v_mov_b32 v4, 0
  v_lshrrev_b32 v5, 1, v0
  v_lshlrev_b32 v5, 13, v5
  v_and_b32 v6, 1, v0
  v_lshl_add_u32 v5, v6, 4, v5
  s_lshl_b32 s48, s44, 10
  s_lshl_b32 s49, s45, 5
  s_add_u32 s48, s48, s49
  s_mov_b32 s38, 0x400000
  s_mov_b32 s39, 0x20000
  s_mov_b32 s52, {f32(LOG2E)}
  s_mov_b32 s53, 0xffff0000
  s_waitcnt lgkmcnt(0)
  global_load_dwordx4 v[16:19], v1, s[4:5]
  global_load_dwordx4 v[20:23], v1, s[4:5] offset:1024
  global_load_dwordx2 v[24:25], v4, s[26:27] sc1
  s_mov_b32 s36, s10
  s_mov_b32 s37, s11''')
    for j in range(16):
        A(f"  s_mov_b32 m0, {W0 + j*1024}")
        A(f"  buffer_load_dwordx4 v5, s[36:39], s48 offen {wflags} lds")
        if j < 15:
            A(f"  s_add_u32 s48, s48, {32*8192}")
    A(f'''  v_mov_b32 v8, -1
  v_mov_b32 v9, -1
  v_mov_b32 v10, -1
  v_mov_b32 v11, -1
  s_lshl_b32 s48, s44, 16
  s_lshl_b32 s49, s45, 11
  s_add_u32 s48, s48, s49
  s_add_u32 s48, s48, {PO}
  v_add_u32 v6, s48, v1
  global_store_dwordx4 v6, v[8:11], s[26:27] sc1
  global_store_dwordx4 v6, v[8:11], s[26:27] offset:1024 sc1
  s_lshl_b32 s48, s44, 5
  s_add_u32 s48, s48, s47
  s_lshl_b32 s48, s48, 10
  s_add_u32 s55, s48, {SY}
  v_add_u32 v6, s55, v1
  global_store_dwordx4 v6, v[8:11], s[26:27] sc1
  s_lshl_b32 s48, s44, 11
  s_lshl_b32 s49, s45, 6
  s_add_u32 s48, s48, s49
  s_add_u32 s48, s48, {PML}
  v_add_u32 v6, s48, v1
  s_mul_i32 s56, s44, 28
  s_add_u32 s56, s56, s45        ; fblk
  s_lshl_b32 s56, s56, 4
  s_add_u32 s48, s56, {HBUF}
  v_writelane_b32 v6, s48, 4
  s_add_u32 s48, s48, 4096
  v_writelane_b32 v6, s48, 5
  s_lshl_b32 s48, s45, 3
  s_add_u32 s48, s48, s44
  s_lshl_b32 s48, s48, 8
  s_add_u32 s48, s48, {TICK}
  v_writelane_b32 v6, s48, 6
  s_movk_i32 s48, 192
  v_mov_b32 v12, -1
  v_writelane_b32 v12, s48, 6
  v_mov_b32 v13, -1
  v_mov_b32 v14, -1
  v_mov_b32 v15, -1
  s_cmp_lt_u32 s45, 28
  s_cselect_b32 s48, 0x3f, 0x0f
  s_cmp_lt_u32 s45, 2
  s_cselect_b32 s49, 0x40, 0
  s_or_b32 exec_lo, s48, s49
  s_mov_b32 exec_hi, 0
  global_store_dwordx4 v6, v[12:15], s[26:27] sc1
  s_mov_b64 exec, -1
  v_mov_b32 v28, 0
  v_mov_b32 v29, 0
  v_mov_b32 v30, 0
  v_mov_b32 v31, 0
  v_add_u32 v7, {W1 + 7168}, v1
  ds_write_b128 v7, v[28:31]
  s_waitcnt vmcnt(20)''')
    stamp(1)
    for b in range(2):
        for j in range(4):
            A(f"  v_lshlrev_b32 v{32+8*b+2*j}, 16, v{16+4*b+j}")
            A(f"  v_and_b32 v{33+8*b+2*j}, s53, v{16+4*b+j}")
    def tree8(dst, base, tmp):
        A(f"  v_add_f32 v{tmp}, v{base}, v{base+1}")
        A(f"  v_add_f32 v{tmp+1}, v{base+2}, v{base+3}")
        A(f"  v_add_f32 v{tmp+2}, v{base+4}, v{base+5}")
        A(f"  v_add_f32 v{tmp+3}, v{base+6}, v{base+7}")
        A(f"  v_add_f32 v{tmp}, v{tmp}, v{tmp+1}")
        A(f"  v_add_f32 v{tmp+2}, v{tmp+2}, v{tmp+3}")
        A(f"  v_add_f32 v{dst}, v{tmp}, v{tmp+2}")
    def allsum(regs, tmps, full=True):
        for sh in (8, 4, 2, 1):
            for r in regs:
                A(f"  v_add_f32_dpp v{r}, v{r}, v{r} row_ror:{sh} row_mask:0xf bank_mask:0xf")
        for r, t in zip(regs, tmps): A(f"  v_mov_b32 v{t}, v{r}")
        for r, t in zip(regs, tmps): A(f"  v_permlane16_swap_b32 v{r}, v{t}")
        for r, t in zip(regs, tmps): A(f"  v_add_f32 v{r}, v{r}, v{t}")
        if full:
            for r, t in zip(regs, tmps): A(f"  v_mov_b32 v{t}, v{r}")
            for r, t in zip(regs, tmps): A(f"  v_permlane32_swap_b32 v{r}, v{t}")
            for r, t in zip(regs, tmps): A(f"  v_add_f32 v{r}, v{r}, v{t}")
    tree8(26, 32, 48); tree8(27, 40, 52)
    allsum([26, 27], [28, 29])
    A(f'''  s_mov_b32 s48, {f32(1.0/512)}
  v_mul_f32 v26, s48, v26
  v_mul_f32 v27, s48, v27''')
    for b in range(2):
        for j in range(8):
            A(f"  v_sub_f32 v{48+8*b+j}, v{32+8*b+j}, v{26+b}")
    for b in range(2):
        A(f"  v_mul_f32 v{28+b}, v{48+8*b}, v{48+8*b}")
        for j in range(1, 8):
            A(f"  v_fmac_f32 v{28+b}, v{48+8*b+j}, v{48+8*b+j}")
    allsum([28, 29], [30, 31])
    A(f'''  v_mul_f32 v28, s48, v28
  v_mul_f32 v29, s48, v29
  v_cvt_pk_bf16_f32 v30, v26, v27     ; means
  v_cvt_pk_bf16_f32 v31, v28, v29     ; vars
  v_lshlrev_b32 v26, 16, v30
  v_and_b32 v27, s53, v30
  v_lshlrev_b32 v28, 16, v31
  v_and_b32 v29, s53, v31
  v_add_f32 v28, {f32(1e-5)}, v28
  v_add_f32 v29, {f32(1e-5)}, v29
  v_cvt_pk_bf16_f32 v31, v28, v29
  v_lshlrev_b32 v28, 16, v31
  v_and_b32 v29, s53, v31
  v_sqrt_f32 v28, v28
  v_sqrt_f32 v29, v29''')
    for b in range(2):
        for j in range(8):
            A(f"  v_sub_f32 v{32+8*b+j}, v{32+8*b+j}, v{26+b}")
    A('''  v_cvt_pk_bf16_f32 v31, v28, v29
  v_lshlrev_b32 v28, 16, v31
  v_and_b32 v29, s53, v31
  v_rcp_f32 v30, v28
  v_rcp_f32 v31, v29''')
    for j in range(8):
        A(f"  v_cvt_pk_bf16_f32 v{48+j}, v{32+2*j}, v{33+2*j}")
    for j in range(8):
        A(f"  v_lshlrev_b32 v{32+2*j}, 16, v{48+j}")
        A(f"  v_and_b32 v{33+2*j}, s53, v{48+j}")
    for j in range(16):
        b = j // 8
        A(f"  v_mul_f32 v{48+j}, v{32+j}, v{30+b}")
    for j in range(16):
        b = j // 8
        A(f"  v_fma_f32 v{32+j}, -v{48+j}, v{28+b}, v{32+j}")
    for j in range(16):
        b = j // 8
        A(f"  v_fmac_f32 v{48+j}, v{32+j}, v{30+b}")
    for j in range(8):
        A(f"  v_cvt_pk_bf16_f32 v{32+j}, v{48+2*j}, v{49+2*j}")
    A(f'''  v_add_u32 v7, {XN}, v1
  ds_write_b128 v7, v[32:35]
  ds_write_b128 v7, v[36:39] offset:1024
  v_and_b32 v6, 1, v0
  v_lshlrev_b32 v7, 10, v6
  v_lshl_add_u32 v7, v2, 3, v7
  v_add_u32 v7, {XN}, v7
  v_lshlrev_b32 v8, 3, v0
  v_add_u32 v8, {W0}, v8
  ; tags
  v_add_u32 v24, 0x9e3779b9, v24
  v_add_u32 v25, 0x7f4a7c15, v25
  v_lshlrev_b32 v26, 16, v25      ; tagA << 16
  s_waitcnt lgkmcnt(0)''')
    for s in range(16):
        A(f"  ds_read2_b64 v[{64+4*s}:{67+4*s}], v7 offset0:{8*s} offset1:{8*s+4}")
    A("  s_waitcnt vmcnt(4)")
    stamp(2)
    for s in range(16):
        A(f"  ds_read_b64_tr_b16 v[{128+4*s}:{129+4*s}], v8 offset:{1024*s}")
        A(f"  ds_read_b64_tr_b16 v[{130+4*s}:{131+4*s}], v8 offset:{1024*s+512}")
    A(f'''  s_lshl_b32 s48, s44, 12
  s_lshl_b32 s49, s45, 7
  s_add_u32 s48, s48, s49
  s_add_u32 s48, s48, {QBUF}
  v_lshlrev_b32 v9, 15, v6
  v_lshl_add_u32 v9, v2, 5, v9
  v_and_b32 v10, 2, v0
  v_lshl_add_u32 v9, v10, 3, v9
  v_add_u32 v9, s48, v9
  v_cmp_ne_u32 vcc, 0, v10
  s_waitcnt lgkmcnt(0)''')
    for s in range(16):
        c = "0" if s == 0 else "v[48:51]"
        A(f"  v_mfma_f32_16x16x32_bf16 v[48:51], v[{128+4*s}:{131+4*s}], v[{64+4*s}:{67+4*s}], {c}")
    A(f'''  v_cvt_pk_bf16_f32 v52, v48, v49
  v_cvt_pk_bf16_f32 v53, v50, v51
  v_cndmask_b32 v52, v52, v53, vcc
  v_and_b32 v53, 0xffff, v52
  v_or_b32 v56, v53, v26
  v_mov_b32 v57, v24
  v_lshrrev_b32 v53, 16, v52
  v_or_b32 v58, v53, v26
  v_mov_b32 v59, v24
  s_mov_b32 exec_lo, 0x000f000f
  s_mov_b32 exec_hi, 0x000f000f
  s_waitcnt vmcnt(0)
  global_store_dwordx4 v9, v[56:59], s[26:27] sc1
  s_mov_b64 exec, -1''')
    stamp(3)
    A(f'''  s_lshl_b32 s48, s42, 15
  s_lshl_b32 s49, s41, 12
  s_add_u32 s48, s48, s49
  s_add_u32 s48, s48, {QBUF}
  v_add_u32 v9, s48, v1
  s_mov_b32 s57, {POLL_LIMIT}
L_qpoll:''')
    for j in range(4):
        A(f"  global_load_dwordx4 v[{32+4*j}:{35+4*j}], v9, s[26:27] offset:{1024*j} sc1")
    A("  s_waitcnt vmcnt(0)")
    A("  v_mov_b32 v10, 0\n  v_mov_b32 v11, 0")
    for j in range(4):
        r = 32 + 4*j
        A(f"  v_xor_b32 v12, v{r}, v26")
        A(f"  v_xor_b32 v13, v{r+2}, v26")
        A(f"  v_or3_b32 v10, v10, v12, v13")
        A(f"  v_xor_b32 v12, v{r+1}, v24")
        A(f"  v_xor_b32 v13, v{r+3}, v24")
        A(f"  v_or3_b32 v11, v11, v12, v13")
    A(f'''  v_and_or_b32 v10, v10, s53, v11
  v_cmp_ne_u32 vcc, 0, v10
  s_cbranch_vccz L_qdone
  s_sub_u32 s57, s57, 1
  s_cmp_eq_u32 s57, 0
  s_cbranch_scc1 L_qdone
  s_sleep {sleep}
  s_branch L_qpoll
L_qdone:
  v_lshlrev_b32 v12, 2, v0
  v_add_u32 v12, {QL}, v12''')
    for j in range(4):
        r = 32 + 4*j
        A(f"  v_and_b32 v{r}, 0xffff, v{r}")
        A(f"  v_lshl_or_b32 v{r}, v{r+2}, 16, v{r}")
        A(f"  ds_write_b32 v12, v{r} offset:{256*j}")
    A("  s_waitcnt lgkmcnt(0)")
    stamp(4)
    A("  s_barrier")
    stamp(5)
    A(f'''  s_setprio 0
  v_lshrrev_b32 v12, 3, v0
  v_lshlrev_b32 v12, 10, v12
  v_and_b32 v13, 7, v0
  v_lshl_add_u32 v12, v13, 4, v12
  s_cmp_ge_u32 s45, 28
  s_cbranch_scc1 L_noffn1
  v_mul_u32_u24 v13, 3584, v0
  s_mov_b32 s38, {512*3584}
  s_mov_b32 s36, s16
  s_mov_b32 s37, s17
  s_mov_b32 s48, s56''')
    for j in range(8):
        A(f"  s_mov_b32 m0, {W0 + j*1024}")
        A(f"  buffer_load_dwordx4 v13, s[36:39], s48 offen {wflags} lds")
        A(f"  s_add_u32 s48, s48, {64*3584}")
    A('''  s_mov_b32 s36, s18
  s_mov_b32 s37, s19
  s_mov_b32 s48, s56''')
    for j in range(8):
        A(f"  s_mov_b32 m0, {W0 + 8192 + j*1024}")
        A(f"  buffer_load_dwordx4 v13, s[36:39], s48 offen {wflags} lds")
        A(f"  s_add_u32 s48, s48, {64*3584}")
    A(f'''  v_lshrrev_b32 v13, 2, v0
  v_lshlrev_b32 v13, 4, v13
  v_and_b32 v14, 1, v0
  v_lshl_add_u32 v13, v14, 3, v13
  v_and_b32 v14, 2, v0
  v_lshl_add_u32 v13, v14, 12, v13
  v_add_u32 v13, {W0}, v13
  s_waitcnt vmcnt(0)''')
    for s in range(16):
        A(f"  ds_read_b64_tr_b16 v[{128+4*s}:{129+4*s}], v13 offset:{512*s}")
        A(f"  ds_read_b64_tr_b16 v[{130+4*s}:{131+4*s}], v13 offset:{512*s+256}")
    A("  s_waitcnt lgkmcnt(0)")
    for s in range(16):
        c = "0" if s == 0 else "v[48:51]"
        A(f"  v_mfma_f32_16x16x32_bf16 v[48:51], v[{128+4*s}:{131+4*s}], v[{64+4*s}:{67+4*s}], {c}")
    A(f'''  v_cvt_pk_bf16_f32 v52, v48, v49
  v_cvt_pk_bf16_f32 v53, v50, v51
  v_mov_b32 v54, v52
  v_mov_b32 v55, v53
  v_permlane32_swap_b32 v52, v54
  v_permlane32_swap_b32 v53, v55
  s_mov_b32 s48, {f32(0.044715)}
  s_mov_b32 s49, {f32(-2.0*0.7978845608028654*LOG2E)}''')
    for j in range(2):
        A(f"  v_lshlrev_b32 v{32+2*j}, 16, v{52+j}")
        A(f"  v_and_b32 v{33+2*j}, s53, v{52+j}")
        A(f"  v_lshlrev_b32 v{36+2*j}, 16, v{54+j}")
        A(f"  v_and_b32 v{37+2*j}, s53, v{54+j}")
    for j in range(4): A(f"  v_mul_f32 v{40+j}, v{32+j}, v{32+j}")
    for j in range(4): A(f"  v_fma_f32 v{40+j}, v{40+j}, s48, 1.0")
    for j in range(4): A(f"  v_mul_f32 v{40+j}, v{40+j}, v{32+j}")
    for j in range(4): A(f"  v_mul_f32 v{40+j}, s49, v{40+j}")
    for j in range(4): A(f"  v_exp_f32 v{40+j}, v{40+j}")
    for j in range(4): A(f"  v_add_f32 v{40+j}, 1.0, v{40+j}")
    for j in range(4): A(f"  v_rcp_f32 v{40+j}, v{40+j}")
    for j in range(4): A(f"  v_mul_f32 v{40+j}, v{40+j}, v{32+j}")
    A('''  v_cvt_pk_bf16_f32 v52, v40, v41
  v_cvt_pk_bf16_f32 v53, v42, v43''')
    for j in range(2):
        A(f"  v_lshlrev_b32 v{40+2*j}, 16, v{52+j}")
        A(f"  v_and_b32 v{41+2*j}, s53, v{52+j}")
    for j in range(4): A(f"  v_mul_f32 v{40+j}, v{40+j}, v{36+j}")
    A(f'''  v_cvt_pk_bf16_f32 v52, v40, v41
  v_cvt_pk_bf16_f32 v53, v42, v43
  v_min_u32 v52, -2, v52
  v_min_u32 v53, -2, v53
  v_lshlrev_b32 v13, 12, v6
  v_lshl_add_u32 v13, v2, 3, v13
  s_add_u32 s48, s56, {HBUF}
  v_add_u32 v13, s48, v13
  s_mov_b32 exec_lo, 0x00030003
  s_mov_b32 exec_hi, 0
  global_store_dwordx2 v13, v[52:53], s[26:27] sc1
  s_mov_b64 exec, -1
L_noffn1:''')
    A(f'''  s_mov_b32 s38, {1792*1024}
  s_mov_b32 s36, s20
  s_mov_b32 s37, s21
  s_mul_i32 s48, s47, {56*1024}
  s_lshl_b32 s49, s44, 7
  s_add_u32 s48, s48, s49''')
    for j in range(7):
        A(f"  s_mov_b32 m0, {W1 + j*1024}")
        A(f"  buffer_load_dwordx4 v12, s[36:39], s48 offen {wflags} lds")
        A(f"  s_add_u32 s48, s48, 8192")
    A(f'''  s_mov_b32 s38, 0x400000
  s_mov_b32 s36, s12
  s_mov_b32 s37, s13
  s_lshl_b32 s48, s47, 17
  s_add_u32 s48, s48, s49''')
    for j in range(16):
        A(f"  s_mov_b32 m0, {W0 + j*1024}")
        A(f"  buffer_load_dwordx4 v12, s[36:39], s48 offen {wflags} lds")
        A(f"  s_add_u32 s48, s48, 8192")
    A(f'''  s_lshl_b32 s48, s42, 10
  s_lshl_b32 s49, s41, 7
  s_add_u32 s48, s48, s49
  s_lshl_b32 s49, s43, 3
  s_add_u32 s58, s48, s49
  v_mov_b32 v15, s58
  global_load_dwordx2 v[16:17], v15, s[4:5]
  v_lshlrev_b32 v13, 12, v6
  v_lshl_add_u32 v13, v2, 3, v13
  s_mul_i32 s48, s47, 112
  s_add_u32 s48, s48, {HBUF}
  v_add_u32 v13, s48, v13
  v_cmp_gt_u32 s[50:51], 32, v0
  s_mov_b32 s57, {POLL_LIMIT}
L_hpoll:
  global_load_dwordx2 v[32:33], v13, s[26:27] sc1
  global_load_dwordx2 v[34:35], v13, s[26:27] offset:32 sc1
  global_load_dwordx2 v[36:37], v13, s[26:27] offset:64 sc1
  global_load_dwordx2 v[38:39], v13, s[26:27] offset:96 sc1
  s_waitcnt vmcnt(0)
  v_cndmask_b32 v38, 0, v38, s[50:51]
  v_cndmask_b32 v39, 0, v39, s[50:51]
  v_max3_u32 v10, v32, v33, v34
  v_max3_u32 v11, v35, v36, v37
  v_max3_u32 v10, v10, v38, v39
  v_max_u32 v10, v10, v11
  v_cmp_eq_u32 vcc, -1, v10
  s_cbranch_vccz L_hdone
  s_sub_u32 s57, s57, 1
  s_cmp_eq_u32 s57, 0
  s_cbranch_scc1 L_hdone
  s_sleep 8
  s_branch L_hpoll
L_hdone:
  v_lshrrev_b32 v13, 2, v0
  v_lshlrev_b32 v13, 7, v13
  v_and_b32 v14, 3, v0
  v_lshl_add_u32 v13, v14, 3, v13
  v_add_u32 v14, {W1}, v13
  v_add_u32 v13, {W0}, v13''')
    for s in range(2):
        for t in range(4):
            r = 192 + (s*4 + t)*4
            A(f"  ds_read_b64_tr_b16 v[{r}:{r+1}], v14 offset:{s*4096 + t*32}")
            A(f"  ds_read_b64_tr_b16 v[{r+2}:{r+3}], v14 offset:{s*4096 + 2048 + t*32}")
    for s in range(4):
        for t in range(4):
            r = 128 + (s*4 + t)*4
            A(f"  ds_read_b64_tr_b16 v[{r}:{r+1}], v13 offset:{s*4096 + t*32}")
            A(f"  ds_read_b64_tr_b16 v[{r+2}:{r+3}], v13 offset:{s*4096 + 2048 + t*32}")
    A(f'''  v_lshrrev_b32 v10, 1, v3            ; tile = n>>1
  v_cmp_eq_u32 s[72:73], 1, v10
  v_cmp_eq_u32 s[74:75], 2, v10
  v_cmp_eq_u32 s[76:77], 3, v10
  v_lshlrev_b32 v11, 8, v6
  v_lshl_add_u32 v11, v10, 6, v11
  v_lshl_add_u32 v11, v2, 4, v11
  v_add_u32 v18, s55, v11
  s_lshl_b32 s48, s41, 15
  s_lshl_b32 s49, s42, 8
  s_add_u32 s48, s48, s49
  s_lshl_b32 s49, s43, 4
  s_add_u32 s48, s48, s49
  s_add_u32 s48, s48, {SY}
  v_lshlrev_b32 v19, 10, v0
  v_add_u32 v19, s48, v19
  s_waitcnt lgkmcnt(0)''')
    for s in range(2):
        for t in range(4):
            r = 192 + (s*4 + t)*4
            c = "0" if s == 0 else f"v[{48+4*t}:{51+4*t}]"
            A(f"  v_mfma_f32_16x16x32_bf16 v[{48+4*t}:{51+4*t}], v[{r}:{r+3}], v[{32+4*s}:{35+4*s}], {c}")
    def publish_gather(off, lab, slp):
        for t in range(1, 4):
            for r in range(4):
                A(f"  v_cndmask_b32 v{48+r}, v{48+r}, v{48+4*t+r}, s[{70+2*t}:{71+2*t}]")
        for r in range(4):
            A(f"  v_min_u32 v{48+r}, -2, v{48+r}")
        A(f'''  s_mov_b32 exec_lo, 0x00ff00ff
  s_mov_b32 exec_hi, 0x00ff00ff
  global_store_dwordx4 v18, v[48:51], s[26:27] offset:{off} sc1
  s_mov_b32 exec_lo, -1
  s_mov_b32 exec_hi, 0
  s_mov_b32 s57, {POLL_LIMIT}
{lab}_poll:
  global_load_dwordx4 v[32:35], v19, s[26:27] offset:{off} sc1
  s_waitcnt vmcnt(0)
  v_max3_u32 v10, v32, v33, v34
  v_max_u32 v10, v10, v35
  v_cmp_eq_u32 vcc, -1, v10
  s_cbranch_vccz {lab}_done
  s_sub_u32 s57, s57, 1
  s_cmp_eq_u32 s57, 0
  s_cbranch_scc1 {lab}_done
  s_sleep {slp}
  s_branch {lab}_poll
{lab}_done:
  s_mov_b64 exec, -1''')
        allsum([32, 33, 34, 35], [36, 37, 38, 39], full=False)
        A('''  v_cvt_pk_bf16_f32 v36, v32, v33
  v_cvt_pk_bf16_f32 v37, v34, v35
  v_lshlrev_b32 v32, 16, v36
  v_and_b32 v33, s53, v36
  v_lshlrev_b32 v34, 16, v37
  v_and_b32 v35, s53, v37''')
    publish_gather(512, "L_y", 8)
    A(f"  s_mov_b32 s48, {f32(-LOG2E)}")
    for j in range(4): A(f"  v_mul_f32 v{36+j}, s48, v{32+j}")
    for j in range(4): A(f"  v_exp_f32 v{36+j}, v{36+j}")
    for j in range(4): A(f"  v_add_f32 v{36+j}, 1.0, v{36+j}")
    for j in range(4): A(f"  v_rcp_f32 v{36+j}, v{36+j}")
    for j in range(4): A(f"  v_mul_f32 v{36+j}, v{36+j}, v{32+j}")
    A(f'''  v_cvt_pk_bf16_f32 v32, v36, v37
  v_cvt_pk_bf16_f32 v33, v38, v39
  v_lshlrev_b32 v20, 16, v32
  v_and_b32 v21, s53, v32
  v_lshlrev_b32 v22, 16, v33
  v_and_b32 v23, s53, v33
  v_lshlrev_b32 v28, 16, v16
  v_and_b32 v29, s53, v16
  v_lshlrev_b32 v30, 16, v17
  v_and_b32 v31, s53, v17
  s_lshl_b32 s48, s47, 14
  s_add_u32 s48, s48, {PO + 4096}
  v_lshrrev_b32 v10, 5, v0
  v_and_b32 v11, 31, v0
  v_lshlrev_b32 v12, 13, v10
  v_lshl_add_u32 v12, v11, 4, v12
  v_add_u32 v12, s48, v12
  s_lshl_b32 s48, s47, 9
  s_add_u32 s48, s48, {PML}
  v_lshlrev_b32 v13, 8, v10
  v_lshl_add_u32 v13, v3, 4, v13
  v_add_u32 v13, s48, v13
  v_lshlrev_b32 v14, 3, v0
  v_add_u32 v14, {OB}, v14
  v_lshlrev_b32 v9, 8, v6
  v_lshl_add_u32 v9, v2, 3, v9
  v_add_u32 v9, {OB}, v9
  s_mov_b32 s57, {POLL_LIMIT}
  s_setprio 3''')
    stamp(6)
    A("  s_barrier")
    stamp(7)
    A("L_ppoll:")
    A("  global_load_dwordx2 v[40:41], v13, s[26:27] sc1")
    for i in range(16):
        A(f"  global_load_dwordx4 v[{64+4*i}:{67+4*i}], v12, s[26:27] offset:{(i-8)*512} sc1")
    A("  s_waitcnt vmcnt(16)")
    A("  v_max_u32 v10, v40, v41")
    A("  v_mov_b32 v42, v40")
    for sh in (8, 4, 2, 1):
        A(f"  v_max_f32_dpp v42, v42, v42 row_ror:{sh} row_mask:0xf bank_mask:0xf")
    A('''  v_sub_f32 v42, v40, v42
  v_mul_f32 v42, s52, v42
  v_exp_f32 v42, v42
  v_mul_f32 v43, v42, v41''')
    for sh in (8, 4, 2, 1):
        A(f"  v_add_f32_dpp v43, v43, v43 row_ror:{sh} row_mask:0xf bank_mask:0xf")
    A('''  v_rcp_f32 v43, v43
  v_mul_f32 v42, v42, v43
  v_mov_b32 v44, 0
  v_mov_b32 v45, 0
  v_mov_b32 v46, 0
  v_mov_b32 v47, 0''')
    for i in range(16):
        if i % 4 == 0:
            A(f"  s_waitcnt vmcnt({12 - i})")
        r = 64 + 4*i
        A(f"  v_max3_u32 v10, v10, v{r}, v{r+1}")
        A(f"  v_max3_u32 v10, v10, v{r+2}, v{r+3}")
        for k in range(4):
            A(f"  v_fmac_f32_dpp v{44+k}, v42, v{r+k} row_newbcast:{i} row_mask:0xf bank_mask:0xf")
    A(f'''  v_cmp_eq_u32 vcc, -1, v10
  s_cbranch_vccz L_pdone
  s_sub_u32 s57, s57, 1
  s_cmp_eq_u32 s57, 0
  s_cbranch_scc1 L_pdone
  s_sleep {sleep}
  s_branch L_ppoll
L_pdone:''')
    stamp(8)
    A('''  v_cvt_pk_bf16_f32 v44, v44, v45
  v_cvt_pk_bf16_f32 v45, v46, v47
  ds_write_b64 v14, v[44:45]
  s_waitcnt lgkmcnt(0)''')
    for s in range(4):
        A(f"  ds_read2_b64 v[{32+4*s}:{35+4*s}], v9 offset0:{8*s} offset1:{8*s+4}")
    for s in range(4):
        A(f"  s_waitcnt lgkmcnt({3-s})")
        for t in range(4):
            r = 128 + (s*4 + t)*4
            c = "0" if s == 0 else f"v[{48+4*t}:{51+4*t}]"
            A(f"  v_mfma_f32_16x16x32_bf16 v[{48+4*t}:{51+4*t}], v[{r}:{r+3}], v[{32+4*s}:{35+4*s}], {c}")
    publish_gather(0, "L_s", 1)
    for j in range(4): A(f"  v_mul_f32 v{32+j}, v{32+j}, v{20+j}")
    A('''  v_cvt_pk_bf16_f32 v36, v32, v33
  v_cvt_pk_bf16_f32 v37, v34, v35
  v_lshlrev_b32 v32, 16, v36
  v_and_b32 v33, s53, v36
  v_lshlrev_b32 v34, 16, v37
  v_and_b32 v35, s53, v37''')
    for j in range(4): A(f"  v_add_f32 v{32+j}, v{32+j}, v{28+j}")
    A('''  v_cvt_pk_bf16_f32 v36, v32, v33
  v_cvt_pk_bf16_f32 v37, v34, v35
  s_mov_b64 exec, 1
  global_store_dwordx2 v15, v[36:37], s[22:23]
  s_cmp_lg_u32 s2, 0
  s_cbranch_scc1 L_noepoch
  global_store_dwordx2 v4, v[24:25], s[26:27]
L_noepoch:''')
    if stamps:
        stamp(9)
        A("  s_waitcnt lgkmcnt(0)")
        A(f"  s_mul_i32 s48, s2, 80\n  s_add_u32 s48, s48, {STAMP}\n  v_mov_b32 v10, s48")
        for k in range(10):
            A(f"  v_mov_b32 v12, s{80+2*k}\n  v_mov_b32 v13, s{81+2*k}")
            A(f"  global_store_dwordx2 v10, v[12:13], s[26:27] offset:{8*k}")
    A("L_end:\n  s_endpgm")
    A(f'''.section .rodata,"a"
.p2align 6
.amdhsa_kernel {NAME}_kernel
  .amdhsa_next_free_vgpr 224
  .amdhsa_next_free_sgpr 102
  .amdhsa_accum_offset 224
  .amdhsa_float_denorm_mode_32 3
  .amdhsa_group_segment_fixed_size 0
  .amdhsa_kernarg_size 96
  .amdhsa_user_sgpr_count 2
  .amdhsa_user_sgpr_kernarg_segment_ptr 1
  .amdhsa_system_sgpr_workgroup_id_x 1
.end_amdhsa_kernel''')
    txt = A.finalize()
    open(path, "w").write(txt)
    return A.auto_nops

if __name__ == "__main__":
    print(gen("k1.s"), gen("k1s.s", stamps=True))
```
